```python
import torch

def _softmax(x, axis=-1):
    return torch.softmax(x, dim=axis)
def _gelu(x):
    return torch.nn.functional.gelu(x, approximate="tanh")
def _silu(x):
    return torch.nn.functional.silu(x)
def _sigmoid(x):
    return torch.sigmoid(x)
def _layernorm(x, axis=-1, eps=1e-5):
    m = x.mean(dim=axis, keepdim=True)
    v = x.var(dim=axis, keepdim=True, unbiased=False)
    return (x - m) / torch.sqrt(v + eps)
def _scatter_add(tgt, idx, src, axis=0):
    return tgt.clone().index_add_(axis, idx, src)
def _segment_sum(src, seg, n):
    out = torch.zeros((n,) + src.shape[1:], dtype=src.dtype)
    return out.index_add_(0, seg, src)
def _pad(x, pw):
    flat = tuple(v for pair in reversed(pw) for v in pair)
    return torch.nn.functional.pad(x, flat)

kernel_name = 'parallel_sum__ssm_conv_s4__glu_gated_reglu__prompt'

def setup_inputs():

    _w = (lambda a: (lambda t: t.to(torch.bfloat16) if t.is_floating_point() else t)(torch.as_tensor(a)))
    def _A_setup():
        B, L, D, N = 1, 2048, 640, 128
        A_re = -(lambda _x: torch.exp(torch.as_tensor(_x)))((lambda *s: torch.randn(*s, dtype=torch.bfloat16) * 6.4)(D, N))
        A_im = torch.pi * (lambda *s: torch.randn(*s, dtype=torch.bfloat16) * 0.05)(D, N)
        B_re = (lambda *s: torch.randn(*s, dtype=torch.bfloat16) * 0.1)(D, N)
        B_im = (lambda *s: torch.randn(*s, dtype=torch.bfloat16) * 0.1)(D, N)
        C_re = (lambda *s: torch.randn(*s, dtype=torch.bfloat16) * 0.1)(D, N)
        C_im = (lambda *s: torch.randn(*s, dtype=torch.bfloat16) * 0.1)(D, N)
        log_dt = (lambda *s: torch.randn(*s, dtype=torch.bfloat16) * 0.05)(D) * 0.5 - 4.0
        Dskip = (lambda *s: torch.randn(*s, dtype=torch.bfloat16) * 0.05)(D)
        return {
            "u": _w((lambda *s: torch.randn(*s, dtype=torch.bfloat16) * 0.05)(B, L, D)),
            "A_re": _w(A_re),
            "A_im": _w(A_im),
            "B_re": _w(B_re),
            "B_im": _w(B_im),
            "C_re": _w(C_re),
            "C_im": _w(C_im),
            "log_dt": _w(log_dt),
            "Dskip": _w(Dskip),
        }
    _A_in = _A_setup()

    def _B_setup():
        B, S, D, F = 1, 2048, 640, 1728
        return {
            "x": _w((lambda *s: torch.randn(*s, dtype=torch.bfloat16) * 0.05)(B, S, D)),
            "W_gate": _w((lambda *s: torch.randn(*s, dtype=torch.bfloat16) * 0.4)(D, F) * (2.0 / D) ** 0.5),
            "W_up": _w((lambda *s: torch.randn(*s, dtype=torch.bfloat16) * 0.4)(D, F) * (2.0 / D) ** 0.5),
            "W_down": _w((lambda *s: torch.randn(*s, dtype=torch.bfloat16) * 0.4)(F, D) * (1.0 / F) ** 0.5),
        }
    _B_in = _B_setup()

    return {
        "A_u": _A_in["u"],
        "A_A_re": _A_in["A_re"],
        "A_A_im": _A_in["A_im"],
        "A_B_re": _A_in["B_re"],
        "A_B_im": _A_in["B_im"],
        "A_C_re": _A_in["C_re"],
        "A_C_im": _A_in["C_im"],
        "A_log_dt": _A_in["log_dt"],
        "A_Dskip": _A_in["Dskip"],
        "B_x": _B_in["x"],
        "B_W_gate": _B_in["W_gate"],
        "B_W_up": _B_in["W_up"],
        "B_W_down": _B_in["W_down"],
    }

def reference(A_u, A_A_re, A_A_im, A_B_re, A_B_im, A_C_re, A_C_im, A_log_dt, A_Dskip, B_x, B_W_gate, B_W_up, B_W_down):
    def _A_ref(u, A_re, A_im, B_re, B_im, C_re, C_im, log_dt, Dskip):
        Bsz, L, D = u.shape
        dt = torch.exp(log_dt)[:, None]
        A = A_re + 1j * A_im
        Bc = B_re + 1j * B_im
        Cc = C_re + 1j * C_im
        logdA = dt * A
        dB = dt * Bc
        l = (lambda x, dt: x.to(dt))(torch.arange(L), A_re.dtype)
        P = torch.exp(logdA[:, :, None] * l[None, None, :])
        K = torch.einsum("dn,dnl,dn->dl", Cc, P, dB).real
        L2 = 2 * L
        Kp = _pad(K, ((0, 0), (0, L)))
        up = (lambda x, *d: x.permute(*d))(u, 0, 2, 1)
        up = _pad(up, ((0, 0), (0, 0), (0, L)))
        Kf = (lambda x, axes=(-2,-1): torch.fft.rfft2(x.float(), dim=axes))(Kp[:, None, :], axes=(-2, -1))
        Uf = (lambda x, axes=(-2,-1): torch.fft.rfft2(x.float(), dim=axes))(up[:, :, None, :], axes=(-2, -1))
        Yf = Uf * Kf[None, :, :, :]
        y = (lambda x, s, axes=(-2,-1): torch.fft.irfft2(x, s=s, dim=axes).to(torch.bfloat16))(Yf, (1, L2), axes=(-2, -1))[:, :, 0, :L]
        y = (lambda x, *d: x.permute(*d))(y, 0, 2, 1) + u * Dskip[None, None, :]
        return y

    def _B_ref(x, W_gate, W_up, W_down):
        gate = torch.einsum("bsd,df->bsf", x, W_gate)
        up = torch.einsum("bsd,df->bsf", x, W_up)
        gate = gate * (lambda x, dt: x.to(dt))(gate > 0, gate.dtype)
        h = gate * up
        return torch.einsum("bsf,fd->bsd", h, W_down)

    x = A_u
    xn = _layernorm(x, axis=-1)
    return x + _A_ref(xn, A_A_re, A_A_im, A_B_re, A_B_im, A_C_re, A_C_im, A_log_dt, A_Dskip) + _B_ref(xn, B_W_gate, B_W_up, B_W_down)
```

```python
ARG = dict(u=0, a_re=8, a_im=16, b_re=24, b_im=32, c_re=40, c_im=48, log_dt=56, dskip=64,
           bx=72, wg=80, wu=88, wd=96, out=104, dbg=112, ws=120)


class A:
    def __init__(self):
        self.lines = []
        self.uid = 0

    def __call__(self, s):
        for ln in s.strip("\n").split("\n"):
            ln = ln.strip()
            if ln:
                self.lines.append(ln if ln.endswith(":") else "    " + ln)

    def label(self, stem="L"):
        self.uid += 1
        return f"{stem}_{id(self) % 9973}_{self.uid}"

    def text(self):
        return "\n".join(self.lines) + "\n"

    def srd(self, d, ptr, nbytes, off=0):
        if off:
            self(f"s_add_u32 s{d}, s{ptr}, {hex(off)}\ns_addc_u32 s{d+1}, s{ptr+1}, 0")
        else:
            self(f"s_mov_b32 s{d}, s{ptr}\ns_mov_b32 s{d+1}, s{ptr+1}")
        self(f"s_mov_b32 s{d+2}, {hex(nbytes)}\ns_mov_b32 s{d+3}, 0x20000")


def kernel(name, body, vgpr=256, acc=None, sgpr=102):
    acc = acc if acc is not None else min(256, (vgpr + 3) // 4 * 4)
    return f""".text
.globl {name}
.p2align 8
.type {name},@function
{name}:
{body}    s_endpgm
.section .rodata,"a"
.p2align 6
.amdhsa_kernel {name}
  .amdhsa_next_free_vgpr {vgpr}
  .amdhsa_next_free_sgpr {sgpr}
  .amdhsa_accum_offset {acc}
  .amdhsa_group_segment_fixed_size 0
  .amdhsa_kernarg_size 128
  .amdhsa_user_sgpr_count 2
  .amdhsa_user_sgpr_kernarg_segment_ptr 1
  .amdhsa_system_sgpr_workgroup_id_x 1
  .amdhsa_float_denorm_mode_32 3
  .amdhsa_float_denorm_mode_16_64 3
.end_amdhsa_kernel
"""


def header(launches):
    h = "".join(f"; @launch kernel={k} grid=({g},1,1) block=({b},1,1) lds={l}\n" for k, g, b, l in launches)
    return h + '.amdgcn_target "amdgcn-amd-amdhsa--gfx950"\n'
```

```python
import sys
from asmlib import *

L, D, N, F = 2048, 640, 128, 1728
WS_XN = 0
WS_K = 4 << 20
WS_Y = 12 << 20
WS_H = 16 << 20


def rnd_bf16(a, v, t):
    a(f"v_cvt_pk_bf16_f32 {t}, {v}, {v}\nv_lshlrev_b32 {v}, 16, {t}")


def allreduce(a, v, t):
    for r in (8, 4, 2, 1):
        a(f"s_nop 1\nv_add_f32_dpp {v}, {v}, {v} row_ror:{r} row_mask:0xf bank_mask:0xf")
    a(f"v_mov_b32 {t}, {v}\ns_nop 1\nv_permlane16_swap_b32 {t}, {v}\ns_nop 1\nv_add_f32 {v}, {v}, {t}")
    a(f"v_mov_b32 {t}, {v}\ns_nop 1\nv_permlane32_swap_b32 {t}, {v}\ns_nop 1\nv_add_f32 {v}, {v}, {t}")


def k_ln():
    a = A()
    a(f"""
    s_cmp_ge_u32 s2, {L // 4}
    s_cbranch_scc1 ln_done
    s_load_dwordx2 s[4:5], s[0:1], {ARG['u']}
    s_load_dwordx2 s[6:7], s[0:1], {ARG['ws']}
    s_waitcnt lgkmcnt(0)""")
    a.srd(8, 4, L * D * 2)
    a.srd(12, 6, L * D * 2, WS_XN)
    a(f"""
    v_lshrrev_b32 v1, 6, v0
    v_and_b32 v2, 63, v0
    s_lshl_b32 s3, s2, 2
    v_add_u32 v1, s3, v1
    v_mul_u32_u24 v1, {D * 2}, v1
    v_lshl_add_u32 v1, v2, 2, v1""")
    for i in range(5):
        a(f"buffer_load_dword v{4+i}, v1, s[8:11], 0 offen offset:{i*256}")
    a("s_waitcnt vmcnt(0)")
    for i in range(5):
        a(f"v_lshlrev_b32 v{10+2*i}, 16, v{4+i}\nv_and_b32 v{11+2*i}, 0xffff0000, v{4+i}")
    a("v_mov_b32 v20, 0")
    for i in range(10):
        a(f"v_add_f32 v20, v20, v{10+i}")
    allreduce(a, "v20", "v21")
    a(f"v_mul_f32 v20, {1.0/D}, v20\nv_mov_b32 v22, 0")
    for i in range(10):
        a(f"v_sub_f32 v23, v{10+i}, v20\nv_fmac_f32 v22, v23, v23")
    allreduce(a, "v22", "v21")
    a(f"v_mul_f32 v22, {1.0/D}, v22")
    rnd_bf16(a, "v20", "v21")
    rnd_bf16(a, "v22", "v21")
    a("v_add_f32 v22, 0x3727c5ac, v22")
    rnd_bf16(a, "v22", "v21")
    a("v_sqrt_f32 v22, v22\ns_nop 0")
    rnd_bf16(a, "v22", "v21")
    a("v_rcp_f32 v22, v22\ns_nop 0")
    for i in range(10):
        a(f"v_sub_f32 v{10+i}, v{10+i}, v20")
        rnd_bf16(a, f"v{10+i}", "v21")
        a(f"v_mul_f32 v{10+i}, v{10+i}, v22")
    for i in range(5):
        a(f"v_cvt_pk_bf16_f32 v{4+i}, v{10+2*i}, v{11+2*i}")
        a(f"buffer_store_dword v{4+i}, v1, s[12:15], 0 offen offset:{i*256}")
    a("ln_done:")
    return kernel("ln_kernel", a.text(), vgpr=32)


def k_kgen():
    a = A()
    a(f"""
    s_cmp_ge_u32 s2, {D * 8}
    s_cbranch_scc1 kg_done
    s_lshr_b32 s20, s2, 3
    s_and_b32 s21, s2, 7
    s_load_dwordx4 s[4:7], s[0:1], {ARG['a_re']}
    s_load_dwordx4 s[8:11], s[0:1], {ARG['b_re']}
    s_load_dwordx4 s[12:15], s[0:1], {ARG['c_re']}
    s_load_dwordx2 s[16:17], s[0:1], {ARG['log_dt']}
    s_load_dwordx2 s[18:19], s[0:1], {ARG['ws']}
    s_waitcnt lgkmcnt(0)""")
    for i, p in enumerate((4, 6, 8, 10, 12, 14)):
        a.srd(24 + 4 * i, p, D * N * 2)
    a.srd(48, 16, D * 2)
    a.srd(52, 18, L * D * 4, WS_K)
    a(f"""
    s_lshl_b32 s22, s20, 1
    v_mov_b32 v2, s22
    buffer_load_ushort v3, v2, s[48:51], 0 offen
    s_lshl_b32 s3, s21, 8
    v_add_u32 v1, s3, v0
    v_cvt_f32_u32 v4, v1""")
    rnd_bf16(a, "v4", "v5")
    a(f"""
    s_waitcnt vmcnt(0)
    v_lshlrev_b32 v3, 16, v3
    v_mul_f32 v3, 0x3fb8aa3b, v3
    v_exp_f32 v3, v3
    s_nop 0""")
    rnd_bf16(a, "v3", "v5")
    a(f"""
    v_mov_b32 v6, 0
    s_lshl_b32 s23, s20, 8
    s_mov_b32 s56, 0
    kg_loop:
    s_add_u32 s57, s23, s56
    v_mov_b32 v2, s57""")
    for i in range(6):
        a(f"buffer_load_ushort v{10+i}, v2, s[{24+4*i}:{27+4*i}], 0 offen")
    a("s_waitcnt vmcnt(0)")
    for i in range(6):
        a(f"v_lshlrev_b32 v{10+i}, 16, v{10+i}")
    a("""
    v_mul_f32 v10, v10, v3
    v_mul_f32 v11, v11, v3
    v_mul_f32 v12, v12, v3
    v_mul_f32 v13, v13, v3
    v_mul_f32 v16, v14, v12
    v_fma_f32 v16, -v15, v13, v16
    v_mul_f32 v17, v14, v13
    v_fma_f32 v17, v15, v12, v17
    v_mul_f32 v10, v10, v4
    v_mul_f32 v10, 0x3fb8aa3b, v10
    v_exp_f32 v10, v10
    v_mul_f32 v11, v11, v4
    v_mul_f32 v11, 0.15915494, v11
    v_fract_f32 v11, v11
    v_cos_f32 v18, v11
    v_sin_f32 v19, v11
    s_nop 0
    v_mul_f32 v18, v18, v16
    v_fma_f32 v18, -v19, v17, v18
    v_fmac_f32 v6, v18, v10
    s_add_u32 s56, s56, 2
    s_cmp_lt_u32 s56, 256
    s_cbranch_scc1 kg_loop""")
    a(f"""
    v_mul_u32_u24 v1, {D * 4}, v1
    s_lshl_b32 s22, s20, 2
    v_add_u32 v1, s22, v1
    buffer_store_dword v6, v1, s[52:55], 0 offen
    kg_done:""")
    return kernel("kgen_kernel", a.text(), vgpr=32)


def k_conv():
    a = A()
    a(f"""
    s_cmp_ge_u32 s2, {(L // 8) * (D // 64)}
    s_cbranch_scc1 cv_done
    s_mul_hi_u32 s20, s2, {(2**32 + 9) // 10}
    s_mul_i32 s3, s20, 10
    s_sub_u32 s21, s2, s3
    s_load_dwordx2 s[4:5], s[0:1], {ARG['u']}
    s_load_dwordx2 s[6:7], s[0:1], {ARG['dskip']}
    s_load_dwordx2 s[18:19], s[0:1], {ARG['ws']}
    s_waitcnt lgkmcnt(0)""")
    a.srd(24, 4, L * D * 2)
    a.srd(28, 6, D * 2)
    a.srd(32, 18, L * D * 2, WS_XN)
    a.srd(36, 18, L * D * 4, WS_K)
    a.srd(40, 18, L * D * 2, WS_Y)
    a(f"""
    s_lshl_b32 s3, s21, 6
    v_add_u32 v1, s3, v0
    v_lshlrev_b32 v2, 1, v1
    v_lshlrev_b32 v3, 2, v1
    s_lshl_b32 s22, s20, 3
    s_mul_i32 s23, s22, {D * 2}
    v_add_u32 v4, s23, v2""")
    for j in range(8):
        a(f"v_mov_b32 v{10+j}, 0")
        a(f"v_add_u32 v5, {j * D * 2}, v4\nbuffer_load_ushort v{20+j}, v5, s[32:35], 0 offen")
    a("s_waitcnt vmcnt(0)")
    for j in range(8):
        a(f"v_lshlrev_b32 v{20+j}, 16, v{20+j}\nv_mov_b32 v{40+j}, v{20+j}")
    a(f"s_mov_b32 s44, 0\ns_add_u32 s45, s22, 8\ncv_loop:")
    for u in range(8):
        a(f"buffer_load_dword v{30+u}, v3, s[36:39], 0 offen\nv_add_u32 v3, {D*4}, v3")
        a(f"v_subrev_u32 v4, {D*2}, v4\nbuffer_load_ushort v{50+u}, v4, s[32:35], 0 offen")
    a("s_waitcnt vmcnt(0)")
    for u in range(8):
        for j in range(8):
            a(f"v_fmac_f32 v{10+j}, v{30+u}, v{20 + (j - u) % 8}")
        a(f"v_lshlrev_b32 v{20 + (7 - u) % 8}, 16, v{50+u}")
    a("""
    s_add_u32 s44, s44, 8
    s_cmp_lt_u32 s44, s45
    s_cbranch_scc1 cv_loop
    buffer_load_ushort v30, v2, s[28:31], 0 offen
    v_add_u32 v4, s23, v2""")
    for j in range(8):
        a(f"v_add_u32 v5, {j * D * 2}, v4\nbuffer_load_ushort v{50+j}, v5, s[24:27], 0 offen")
    a("s_waitcnt vmcnt(0)\nv_lshlrev_b32 v30, 16, v30")
    for j in range(8):
        rnd_bf16(a, f"v{10+j}", "v31")
        a(f"v_mul_f32 v{40+j}, v{40+j}, v30")
        rnd_bf16(a, f"v{40+j}", "v31")
        a(f"v_add_f32 v{10+j}, v{10+j}, v{40+j}")
        rnd_bf16(a, f"v{10+j}", "v31")
        a(f"v_lshlrev_b32 v{50+j}, 16, v{50+j}\nv_add_f32 v{10+j}, v{10+j}, v{50+j}")
        a(f"v_cvt_pk_bf16_f32 v{10+j}, v{10+j}, v{10+j}")
        a(f"v_add_u32 v5, {j * D * 2}, v4\nbuffer_store_short v{10+j}, v5, s[40:43], 0 offen")
    a("cv_done:")
    return kernel("conv_kernel", a.text(), vgpr=64)


def k_gemm(name, first):
    ncol = F if first else D
    K = D if first else F
    nb = ncol // 64
    a = A()
    a(f"""
    s_cmp_ge_u32 s2, {(L // 8) * nb}
    s_cbranch_scc1 {name}_done
    s_mul_hi_u32 s20, s2, {(2**32 + nb - 1) // nb}
    s_mul_i32 s3, s20, {nb}
    s_sub_u32 s21, s2, s3
    s_load_dwordx4 s[4:7], s[0:1], {ARG['wg']}
    s_load_dwordx4 s[8:11], s[0:1], {ARG['wd']}
    s_load_dwordx2 s[18:19], s[0:1], {ARG['ws']}
    s_waitcnt lgkmcnt(0)""")
    a.srd(24, 4 if first else 8, D * F * 2)
    a.srd(28, 6, D * F * 2)
    if first:
        a.srd(32, 18, L * F * 2, WS_H)
    else:
        a.srd(32, 10, L * D * 2)
        a.srd(36, 18, L * D * 2, WS_Y)
    a(f"""
    s_lshl_b32 s3, s21, 6
    v_add_u32 v1, s3, v0
    v_lshlrev_b32 v2, 1, v1
    v_mov_b32 v3, v2
    s_mul_i32 s22, s20, {8 * K * 2}
    s_add_u32 s22, s22, {WS_XN if first else WS_H}
    s_add_u32 s40, s18, s22
    s_addc_u32 s41, s19, 0""")
    for j in range(16):
        a(f"v_mov_b32 v{10+j}, 0")
    a(f"s_mov_b32 s44, 0\n{name}_loop:")
    for j in range(8):
        a(f"s_add_u32 s42, s44, {j * K * 2}\ns_load_dwordx4 s[{48+4*j}:{51+4*j}], s[40:41], s42")
    for u in range(8):
        a(f"buffer_load_ushort v{30+u}, v3, s[24:27], 0 offen")
        if first:
            a(f"buffer_load_ushort v{40+u}, v3, s[28:31], 0 offen")
        a(f"v_add_u32 v3, {ncol * 2}, v3")
    a("s_waitcnt vmcnt(0) lgkmcnt(0)")
    for u in range(8):
        a(f"v_lshlrev_b32 v{30+u}, 16, v{30+u}")
        if first:
            a(f"v_lshlrev_b32 v{40+u}, 16, v{40+u}")
        for j in range(8):
            s = 48 + 4 * j + u // 2
            a(f"s_lshl_b32 s43, s{s}, 16" if u % 2 == 0 else f"s_and_b32 s43, s{s}, 0xffff0000")
            a(f"v_fmac_f32 v{10+j}, s43, v{30+u}")
            if first:
                a(f"v_fmac_f32 v{18+j}, s43, v{40+u}")
    a(f"""
    s_add_u32 s44, s44, 16
    s_cmp_lt_u32 s44, {K * 2}
    s_cbranch_scc1 {name}_loop
    s_mul_i32 s23, s20, {8 * ncol * 2}
    v_add_u32 v4, s23, v2""")
    if not first:
        for j in range(8):
            a(f"v_add_u32 v5, {j * ncol * 2}, v4\nbuffer_load_ushort v{50+j}, v5, s[36:39], 0 offen")
        a("s_waitcnt vmcnt(0)")
    for j in range(8):
        rnd_bf16(a, f"v{10+j}", "v31")
        if first:
            rnd_bf16(a, f"v{18+j}", "v31")
            a(f"v_max_f32 v{10+j}, 0, v{10+j}\nv_mul_f32 v{10+j}, v{10+j}, v{18+j}")
        else:
            a(f"v_lshlrev_b32 v{50+j}, 16, v{50+j}\nv_add_f32 v{10+j}, v{10+j}, v{50+j}")
        a(f"v_cvt_pk_bf16_f32 v{10+j}, v{10+j}, v{10+j}")
        a(f"v_add_u32 v5, {j * ncol * 2}, v4\nbuffer_store_short v{10+j}, v5, s[32:35], 0 offen")
    a(f"{name}_done:")
    return kernel(name + "_kernel", a.text(), vgpr=64)


def empty(name):
    return kernel(name, "", vgpr=32)


def build(extra=0):
    ls = [("ln_kernel", L // 4, 256, 0), ("kgen_kernel", D * 8, 256, 0), ("conv_kernel", (L // 8) * (D // 64), 64, 0),
          ("f1_kernel", (L // 8) * (F // 64), 64, 0), ("f2_kernel", (L // 8) * (D // 64), 64, 0)]
    ls += [("empty_kernel", 256, 256, 0)] * extra
    s = header(ls) + k_ln() + k_kgen() + k_conv() + k_gemm("f1", True) + k_gemm("f2", False)
    if extra:
        s += empty("empty_kernel")
    return s


if __name__ == "__main__":
    for e in (0, 1, 4):
        open(f"naive{e}.s", "w").write(build(e))
```
